```python
import torch

def _softmax(x, axis=-1):
    return torch.softmax(x, dim=axis)
def _gelu(x):
    return torch.nn.functional.gelu(x, approximate="tanh")
def _silu(x):
    return torch.nn.functional.silu(x)
def _sigmoid(x):
    return torch.sigmoid(x)
def _layernorm(x, axis=-1, eps=1e-5):
    m = x.mean(dim=axis, keepdim=True)
    v = x.var(dim=axis, keepdim=True, unbiased=False)
    return (x - m) / torch.sqrt(v + eps)
def _scatter_add(tgt, idx, src, axis=0):
    return tgt.clone().index_add_(axis, idx, src)
def _segment_sum(src, seg, n):
    out = torch.zeros((n,) + src.shape[1:], dtype=src.dtype)
    return out.index_add_(0, seg, src)
def _pad(x, pw):
    flat = tuple(v for pair in reversed(pw) for v in pair)
    return torch.nn.functional.pad(x, flat)

kernel_name = 'standalone__attention_interact_autoint__recsys'

def setup_inputs():

    _w = (lambda a: (lambda t: t.to(torch.bfloat16) if t.is_floating_point() else t)(torch.as_tensor(a)))
    B, F = 4096, 100
    D = max(2, (16 // 2) * 2)
    H = 2
    Dh = D // H
    return {
        "e": _w((lambda *s: torch.randn(*s, dtype=torch.bfloat16) * 0.05)(B, F, D).to(float)),
        "wq": _w((lambda *s: torch.randn(*s, dtype=torch.bfloat16) * 6.4)(H, D, Dh).to(float)),
        "wk": _w((lambda *s: torch.randn(*s, dtype=torch.bfloat16) * 6.4)(H, D, Dh).to(float)),
        "wv": _w((lambda *s: torch.randn(*s, dtype=torch.bfloat16) * 0.05)(H, D, Dh).to(float)),
        "wres": _w((lambda *s: torch.randn(*s, dtype=torch.bfloat16) * 0.05)(D, D).to(float)),
    }

def reference(e, wq, wk, wv, wres):
    H, D, Dh = wq.shape[0], wq.shape[1], wq.shape[2]
    B, F = e.shape[0], e.shape[1]
    q = torch.einsum('bfd,hdk->bhfk', e, wq)
    k = torch.einsum('bfd,hdk->bhfk', e, wk)
    v = torch.einsum('bfd,hdk->bhfk', e, wv)
    scale = float(Dh) ** -0.5
    scores = torch.einsum('bhfk,bhgk->bhfg', q, k) * scale
    attn = _softmax(scores, axis=-1)
    attn = (lambda x, dt: x.to(dt))(attn, v.dtype)
    ctx = torch.einsum('bhfg,bhgk->bhfk', attn, v)
    ctx = (lambda x, *d: x.permute(*d))(ctx, 0, 2, 1, 3).reshape(B, F, H * Dh)
    res = torch.einsum('bfd,de->bfe', e, wres)
    out = ctx + res
    mask = (lambda x, dt: x.to(dt))(out > 0, out.dtype)
    return out * mask
```

```python
import re

_VREG = re.compile(r"\bv(\d+)\b")
_VRANGE = re.compile(r"\bv\[(\d+):(\d+)\]")
_SREG = re.compile(r"\bs(\d+)\b")
_SRANGE = re.compile(r"\bs\[(\d+):(\d+)\]")


def vregs(text):
    out = set()
    for m in _VRANGE.finditer(text):
        out.update(range(int(m.group(1)), int(m.group(2)) + 1))
    text2 = _VRANGE.sub(" ", text)
    for m in _VREG.finditer(text2):
        out.add(int(m.group(1)))
    return out


def sregs(text):
    out = set()
    for m in _SRANGE.finditer(text):
        out.update(range(int(m.group(1)), int(m.group(2)) + 1))
    text2 = _SRANGE.sub(" ", text)
    for m in _SREG.finditer(text2):
        out.add(int(m.group(1)))
    if re.search(r"\bvcc\b", text):
        out.add("vcc")
    return out


class Asm:
    MFMA_RAW = 8
    MFMA_WAR_C = 3
    MFMA_CHAIN_MIXED = 10

    def __init__(self):
        self.lines = []
        self.hist = []
        self.slot = 0
        self.nops = 0

    def raw(self, text):
        self.lines.append(text)

    def comment(self, text):
        self.lines.append("    ; " + text)

    def label(self, name, conservative=True):
        self.lines.append(name + ":")
        if conservative:
            self.barrier()

    def barrier(self):
        self._nop(8)
        self.hist = []

    def forget(self):
        self.hist = []

    def _nop(self, n):
        while n > 0:
            k = min(n, 8)
            self.lines.append(f"    s_nop {k-1}")
            self.slot += k
            self.nops += k
            n -= k

    def _emit(self, text, kind, w=(), r=(), srcc=(), ab=(), sw=(), sr=(), dpp=False):
        op = text.split()[0]
        w, r, srcc, ab, sw, sr = map(set, (w, r, srcc, ab, sw, sr))
        need = 0
        for p in self.hist[-24:]:
            gap = None
            pk = p["kind"]
            if kind == "mfma" and pk in ("valu", "trans"):
                if p["w"] & (r | srcc | ab):
                    gap = 2
            if pk == "mfma":
                if kind in ("valu", "trans"):
                    if p["w"] & (r | w):
                        gap = max(gap or 0, self.MFMA_RAW)
                    if p["srcc"] & w:
                        gap = max(gap or 0, self.MFMA_WAR_C)
                elif kind == "mfma":
                    if p["w"] & ab:
                        gap = max(gap or 0, self.MFMA_RAW)
                    if p["w"] & srcc and (p["w"] != srcc or p.get("op") != op):
                        gap = max(gap or 0, self.MFMA_CHAIN_MIXED)
                elif kind in ("vmem", "ds"):
                    if p["w"] & (r | w):
                        gap = max(gap or 0, self.MFMA_RAW)
            if pk == "trans" and kind == "valu":
                if p["w"] & r:
                    gap = max(gap or 0, 1)
            if pk in ("valu", "trans"):
                if kind in ("valu", "trans") and (p["sw"] & sr):
                    gap = max(gap or 0, 2)
                if kind in ("valu", "trans") and dpp and (p["w"] & r):
                    gap = max(gap or 0, 2)
                if kind == "vmem" and (p["sw"] & sr):
                    gap = max(gap or 0, 5)
                if kind == "rdlane" and (p["w"] & r):
                    gap = max(gap or 0, 1)
            if gap is not None:
                need = max(need, p["slot"] + 1 + gap)
        if need > self.slot:
            self._nop(need - self.slot)
        self.lines.append("    " + text)
        self.hist.append(dict(slot=self.slot, kind=kind if kind != "rdlane" else "valu", w=w, r=r,
                              srcc=srcc, sw=sw, op=op))
        self.slot += 1

    def salu(self, text):
        self._emit(text, "salu")

    def valu(self, op, dst, *srcs, trans=False, dpp=False, extra=""):
        text = f"{op} {dst}, " + ", ".join(srcs) + (" " + extra if extra else "")
        w = vregs(dst)
        r = set()
        for s in srcs:
            r |= vregs(s)
        sr = set()
        for s in srcs:
            sr |= sregs(s)
        self._emit(text, "trans" if trans else "valu", w=w, r=r, sr=sr, dpp=dpp)

    def valu_sw(self, op, sdst, *srcs):
        text = f"{op} {sdst}, " + ", ".join(srcs)
        r = set()
        for s in srcs:
            r |= vregs(s)
        kind = "rdlane" if "readfirstlane" in op or "readlane" in op else "valu"
        self._emit(text, kind, w=(), r=r, sw=sregs(sdst))

    def permlane(self, op, a, b):
        text = f"{op} {a}, {b}"
        regs = vregs(a) | vregs(b)
        self._emit(text, "valu", w=regs, r=regs, dpp=True)

    def mfma(self, op, d, a, b, c):
        text = f"{op} {d}, {a}, {b}, {c}"
        self._emit(text, "mfma", w=vregs(d), r=set(), ab=vregs(a) | vregs(b), srcc=vregs(c))

    def vmem(self, text, w=(), r=(), sr=()):
        self._emit(text, "vmem", w=w, r=r, sr=sr)

    def waitcnt(self, text):
        self._emit("s_waitcnt " + text, "salu")

    def text(self):
        return "\n".join(self.lines) + "\n"
```

```python
import math
import struct
import sys

from asmlib import Asm

NAME = "standalone__attention_interact_autoint__recsys"
NB = 4096
OOB = 0x10000


def f32hex(x):
    return "0x%08x" % struct.unpack("<I", struct.pack("<f", x))[0]


V_MAIN, V_STORE, V_TS0, V_TS1 = 1, 2, 3, 4
V_ABS = 6
V_TAILP, V_ZERO = 8, 9
E0 = 10
ETK = 22
ETC = 24
NF = (26, 28)
WR = (30, 32)
EMAX = 34
TP = 36
TA = 38
CC = 40
TD = 44
RR = 48
ACC = 52
VF = (56, 70)
S0 = 84
TMP = 112
NVGPR = 120


def v(n):
    return f"v{n}"


def vt(n, k):
    return f"v[{n}:{n+k-1}]"


def efrag(kt):
    return E0 + 2 * kt if kt < 6 else ETK


M16 = "v_mfma_f32_16x16x16_bf16"
M32 = "v_mfma_f32_16x16x32_bf16"

S_EXACT = "s44"
S_BAD = "s[46:47]"
S_TSEL = "s[48:49]"


import os
DBG = os.environ.get("KDBG", "")

def gen():
    A = Asm()
    out_of_line = []
    dbg_slot = [0]

    def dump(regs, tag):
        if tag not in DBG.split(","):
            return
        A.salu("s_load_dwordx2 s[52:53], s[0:1], 56")
        A.waitcnt("lgkmcnt(0)")
        A.salu("s_mul_i32 s54, s33, 65536")
        A.salu("s_add_u32 s52, s52, s54")
        A.salu("s_addc_u32 s53, s53, 0")
        A.salu("s_mov_b32 s54, 65536")
        A.salu("s_mov_b32 s55, 0x00020000")
        A.valu("v_mbcnt_lo_u32_b32", v(119), "-1", "0")
        A.valu("v_mbcnt_hi_u32_b32", v(119), "-1", v(119))
        A.valu("v_lshlrev_b32", v(119), "2", v(119))
        for r in regs:
            A.salu(f"s_mov_b32 s56, {256*dbg_slot[0]}")
            A.vmem(f"buffer_store_dword {v(r)}, {v(119)}, s[52:55], s56 offen", r=[r, 119])
            sys.stderr.write(f"dump slot {dbg_slot[0]} = v{r} ({tag})\n")
            dbg_slot[0] += 1
        A.waitcnt("vmcnt(0)")

    A.raw(f"""; Kernarg layout for this problem (64 bytes, ptrs only, base s[0:1]):
; @launch grid=(1024,1,1) block=(256,1,1) lds=0
.amdgcn_target "amdgcn-amd-amdhsa--gfx950"
.text
.globl {NAME}_kernel
.p2align 8
.type {NAME}_kernel,@function
{NAME}_kernel:""")

    A.salu("s_load_dwordx4 s[4:7], s[0:1], 0")
    A.salu("s_load_dwordx4 s[8:11], s[0:1], 16")
    A.salu("s_load_dwordx4 s[12:15], s[0:1], 32")
    A.valu("v_lshrrev_b32", v(7), "6", v(0))
    A.valu_sw("v_readfirstlane_b32", "s3", v(7))
    A.salu("s_lshl_b32 s33, s2, 2")
    A.salu("s_add_u32 s33, s33, s3")
    A.salu(f"s_cmp_ge_u32 s33, {NB}")
    A.salu("s_cbranch_scc1 L_end")

    LN, LI, LG, LI3 = 112, 113, 114, 116
    A.valu("v_and_b32", v(LN), "63", v(0))
    A.valu("v_and_b32", v(LI), "15", v(LN))
    A.valu("v_lshrrev_b32", v(LG), "4", v(LN))
    A.valu("v_and_b32", v(LI3), "3", v(LI))
    A.valu("v_lshlrev_b32", v(V_MAIN), "5", v(LI))
    A.valu("v_lshl_add_u32", v(V_STORE), v(LG), "2", v(V_MAIN))
    A.valu("v_lshl_add_u32", v(V_MAIN), v(LG), "3", v(V_MAIN))
    VOOB = 47
    A.valu("v_mov_b32", v(VOOB), "0x%x" % OOB)
    A.valu("v_lshlrev_b32", v(115), "3", v(LI))
    A.valu("v_lshl_add_u32", v(115), v(LG), "3", v(115))
    A.valu("v_add_u32", v(115), "3072", v(115))
    A.valu_sw("v_cmp_eq_u32", "vcc", "0", v(LI3))
    A.valu("v_cndmask_b32", v(115), v(VOOB), v(115), "vcc")
    A.valu("v_lshlrev_b32", v(118), "5", v(LI3))
    A.valu("v_lshl_add_u32", v(119), v(LG), "2", v(118))
    A.valu("v_lshl_add_u32", v(118), v(LG), "3", v(118))
    A.valu("v_add_u32", v(118), "3072", v(118))
    A.valu("v_add_u32", v(119), "3072", v(119))
    A.valu_sw("v_cmp_gt_u32", "vcc", "8", v(LI))
    A.valu("v_cndmask_b32", v(118), v(VOOB), v(118), "vcc")
    A.valu_sw("v_cmp_gt_u32", "vcc", "4", v(LI))
    A.valu("v_cndmask_b32", v(V_TS0), v(VOOB), v(119), "vcc")
    A.valu("v_lshrrev_b32", v(117), "2", v(LI))
    A.valu_sw("v_cmp_eq_u32", "vcc", "1", v(117))
    A.valu("v_cndmask_b32", v(V_TS1), v(VOOB), v(119), "vcc")
    VWQK, VWV, VWR = 44, 45, 46
    A.valu("v_lshlrev_b32", v(VWQK), "4", v(LI))
    A.valu("v_lshl_add_u32", v(VWQK), v(LG), "3", v(VWQK))
    A.valu_sw("v_cmp_gt_u32", "vcc", "2", v(LG))
    A.valu("v_cndmask_b32", v(VWQK), v(VOOB), v(VWQK), "vcc")
    A.valu("v_lshl_add_u32", v(117), v(117), "1", v(LI3))
    A.valu("v_lshlrev_b32", v(117), "1", v(117))
    A.valu("v_lshl_add_u32", v(VWV), v(LG), "6", v(117))
    A.valu("v_lshl_add_u32", v(VWR), v(LG), "7", v(117))
    A.valu_sw("v_cmp_gt_u32", "vcc", "2", v(LI3))
    A.valu("v_cndmask_b32", v(VWV), v(VOOB), v(VWV), "vcc")
    A.valu("v_cndmask_b32", v(VWR), v(VOOB), v(VWR), "vcc")
    A.valu("v_mov_b32", v(V_ZERO), "0")
    A.valu("v_mov_b32", v(V_ABS), "0x7fff7fff")
    A.valu_sw("v_cmp_eq_u32", "vcc", "2", v(LI3))
    A.valu("v_mov_b32", v(117), "1.0")
    A.valu("v_cndmask_b32", v(88), v(V_ZERO), v(117), "vcc")
    for r in (89, 90, 91):
        A.valu("v_mov_b32", v(r), v(88))
    A.salu("s_mov_b32 s48, 0x00f000f0")
    A.salu("s_mov_b32 s49, 0x00f000f0")
    A.salu(f"s_mov_b32 {S_EXACT}, 0")
    A.salu("s_mov_b64 s[46:47], 0")

    A.waitcnt("lgkmcnt(0)")
    A.salu("s_mul_i32 s34, s33, 3200")
    A.salu("s_add_u32 s16, s4, s34")
    A.salu("s_addc_u32 s17, s5, 0")
    A.salu("s_mov_b32 s18, 3200")
    A.salu("s_mov_b32 s19, 0x00020000")
    A.salu("s_add_u32 s20, s14, s34")
    A.salu("s_addc_u32 s21, s15, 0")
    A.salu("s_mov_b32 s22, 3200")
    A.salu("s_mov_b32 s23, 0x00020000")
    for base, lo in ((24, 6), (28, 8), (36, 10), (40, 12)):
        A.salu(f"s_mov_b32 s{base}, s{lo}")
        A.salu(f"s_mov_b32 s{base+1}, s{lo+1}")
        A.salu(f"s_mov_b32 s{base+2}, 512")
        A.salu(f"s_mov_b32 s{base+3}, 0x00020000")

    for h in (0, 1):
        A.vmem(f"buffer_load_dwordx2 {vt(100+4*h,2)}, {v(VWQK)}, s[24:27], 0 offen offset:{256*h}",
               w=range(100 + 4 * h, 102 + 4 * h), r=[VWQK])
        A.vmem(f"buffer_load_dwordx2 {vt(102+4*h,2)}, {v(VWQK)}, s[28:31], 0 offen offset:{256*h}",
               w=range(102 + 4 * h, 104 + 4 * h), r=[VWQK])
    for h in (0, 1):
        for s in range(4):
            reg = 92 + 4 * h + s
            A.vmem(f"buffer_load_ushort {v(reg)}, {v(VWV)}, s[36:39], 0 offen offset:{256*h+16*s}", w=[reg], r=[VWV])
    for h in (0, 1):
        for s in range(4):
            reg = 36 + 4 * h + s
            A.vmem(f"buffer_load_ushort {v(reg)}, {v(VWR)}, s[40:43], 0 offen offset:{32*s+16*h}", w=[reg], r=[VWR])
    for t in range(6):
        A.vmem(f"buffer_load_dwordx2 {vt(E0+2*t,2)}, {v(V_MAIN)}, s[16:19], 0 offen offset:{512*t}",
               w=range(E0 + 2 * t, E0 + 2 * t + 2), r=[V_MAIN])
    A.vmem(f"buffer_load_dwordx2 {vt(ETK,2)}, {v(115)}, s[16:19], 0 offen", w=[ETK, ETK + 1], r=[115])
    A.vmem(f"buffer_load_dwordx2 {vt(ETC,2)}, {v(118)}, s[16:19], 0 offen", w=[ETC, ETC + 1], r=[118])

    A.waitcnt("vmcnt(8)")
    for h in (0, 1):
        for j in range(2):
            A.valu("v_lshl_or_b32", v(84 + 2 * h + j), v(92 + 4 * h + 2 * j + 1), "16", v(92 + 4 * h + 2 * j))
            A.valu("v_lshl_or_b32", v(WR[h] + j), v(36 + 4 * h + 2 * j + 1), "16", v(36 + 4 * h + 2 * j))
    cscale = f32hex((8 ** -0.5) * math.log2(math.e))
    for h in (0, 1):
        A.mfma(M16, vt(108, 4), vt(100 + 4 * h, 2), vt(102 + 4 * h, 2), "0")
        for r in range(4):
            A.valu("v_mul_f32", v(108 + r), cscale, v(108 + r))
        A.valu("v_cvt_pk_bf16_f32", v(NF[h]), v(108), v(109))
        A.valu("v_cvt_pk_bf16_f32", v(NF[h] + 1), v(110), v(111))

    A.waitcnt("vmcnt(0)")
    for j in range(2):
        A.valu("v_and_b32", v(EMAX + j), v(V_ABS), v(E0 + j))
    for kt in range(1, 7):
        for j in range(2):
            A.valu("v_and_b32", v(116 + j), v(V_ABS), v(efrag(kt) + j))
            A.valu("v_pk_max_u16", v(EMAX + j), v(EMAX + j), v(116 + j))
    for sh in (8, 4, 2, 1):
        for j in range(2):
            A.valu("v_mov_b32_dpp", v(116 + j), v(EMAX + j), dpp=True,
                   extra=f"row_ror:{sh} row_mask:0xf bank_mask:0xf")
            A.valu("v_pk_max_u16", v(EMAX + j), v(EMAX + j), v(116 + j))

    k = 0
    for kt in range(7):
        for h in (0, 1):
            d = 92 + 4 * (k & 1)
            k += 1
            A.mfma(M16, vt(d, 4), vt(efrag(kt), 2), vt(84 + 2 * h, 2), vt(88, 4))
            A.valu("v_cvt_pk_bf16_f32", v(VF[h] + 2 * kt), v(d), v(d + 1))
            A.valu("v_cvt_pk_bf16_f32", v(VF[h] + 2 * kt + 1), v(d + 2), v(d + 3))

    A.label("L_main", conservative=False)
    negm = f32hex(-(1.0 + 2.0 ** -6))
    thr = f32hex(2.0 ** -60)
    tile_id = [0]

    def shift_and_scores(n):
        A.valu("v_and_b32", v(TA), v(V_ABS), v(TP))
        A.valu("v_and_b32", v(TA + 1), v(V_ABS), v(TP + 1))
        A.mfma(M16, vt(CC, 4), vt(EMAX, 2), vt(TA, 2), "0")
        for r in range(4):
            A.valu("v_mul_f32", v(CC + r), negm, v(CC + r))
        A.salu(f"s_cmp_lg_u32 {S_EXACT}, 0")
        A.salu(f"s_cbranch_scc1 L_exact_{n}")
        A.raw(f"L_back_{n}:")
        X = Asm()
        X.label(f"L_exact_{n}")
        for kt in range(7):
            X.mfma(M16, vt(S0 + 4 * kt, 4), vt(efrag(kt), 2), vt(TP, 2), "0")
        vals = [S0 + i for i in range(24)] + [S0 + 24]
        X.valu("v_max3_f32", v(TMP), v(vals[0]), v(vals[1]), v(vals[2]))
        i = 3
        while i + 1 < len(vals):
            X.valu("v_max3_f32", v(TMP), v(TMP), v(vals[i]), v(vals[i + 1]))
            i += 2
        if i < len(vals):
            X.valu("v_max_f32", v(TMP), v(TMP), v(vals[i]))
        for op in ("v_permlane32_swap_b32", "v_permlane16_swap_b32"):
            X.valu("v_mov_b32", v(TMP + 1), v(TMP))
            X.permlane(op, v(TMP), v(TMP + 1))
            X.valu("v_max_f32", v(TMP), v(TMP), v(TMP + 1))
        for r in range(4):
            X.valu("v_mul_f32", v(CC + r), "-1.0", v(TMP))
        X.barrier()
        X.salu(f"s_branch L_back_{n}")
        out_of_line.append(X)
        for kt in range(7):
            A.mfma(M16, vt(S0 + 4 * kt, 4), vt(efrag(kt), 2), vt(TP, 2), vt(CC, 4))

    def softmax_pv(h_list):
        pend = []
        for p in range(3):
            base = S0 + 8 * p
            for i in range(8):
                A.valu("v_exp_f32", v(base + i), v(base + i), trans=True)
            for (h, first, bb) in pend:
                A.mfma(M32, vt(ACC, 4), vt(VF[h] + 4 * (bb), 4), vt(S0 + 8 * bb, 4),
                       "0" if first else vt(ACC, 4))
            pend = []
            for i in range(4):
                A.valu("v_cvt_pk_bf16_f32", v(base + i), v(base + 2 * i), v(base + 2 * i + 1))
            pend.append((h_list[0], p == 0, p))
        A.valu("v_exp_f32", v(S0 + 24), v(S0 + 24), trans=True)
        for (h, first, bb) in pend:
            A.mfma(M32, vt(ACC, 4), vt(VF[h] + 4 * bb, 4), vt(S0 + 8 * bb, 4), "0" if first else vt(ACC, 4))
        A.valu("v_cvt_pk_bf16_f32", v(V_TAILP), v(S0 + 24), "0")
        A.mfma(M16, vt(ACC, 4), vt(VF[h_list[0]] + 12, 2), vt(V_TAILP, 2), vt(ACC, 4))

    def pv_again(h):
        for p in range(3):
            A.mfma(M32, vt(ACC, 4), vt(VF[h] + 4 * p, 4), vt(S0 + 8 * p, 4), "0" if p == 0 else vt(ACC, 4))
        A.mfma(M16, vt(ACC, 4), vt(VF[h] + 12, 2), vt(V_TAILP, 2), vt(ACC, 4))

    def epilogue(voff, imm):
        A.valu("v_rcp_f32", v(TMP), v(ACC + 2), trans=True)
        A.valu_sw("v_cmp_gt_f32", "vcc", thr, v(ACC + 2))
        A.salu("s_or_b64 s[46:47], s[46:47], vcc")
        A.valu("v_fma_f32", v(TMP + 1), v(ACC), v(TMP), v(RR))
        A.valu("v_fma_f32", v(TMP + 2), v(ACC + 1), v(TMP), v(RR + 1))
        A.valu("v_cvt_pk_bf16_f32", v(TMP + 3), v(TMP + 1), v(TMP + 2))
        A.valu("v_pk_max_i16", v(TMP + 3), v(TMP + 3), v(V_ZERO))
        A.vmem(f"buffer_store_dword {v(TMP+3)}, {v(voff)}, s[20:23], 0 offen offset:{imm}",
               r=[TMP + 3, voff])

    for qt in range(6):
        for h in (0, 1):
            n = tile_id[0]
            tile_id[0] += 1
            A.mfma(M16, vt(TD, 4), vt(NF[h], 2), vt(E0 + 2 * qt, 2), "0")
            A.mfma(M16, vt(RR, 4), vt(WR[h], 2), vt(E0 + 2 * qt, 2), "0")
            A.valu("v_cvt_pk_bf16_f32", v(TP), v(TD), v(TD + 1))
            A.valu("v_cvt_pk_bf16_f32", v(TP + 1), v(TD + 2), v(TD + 3))
            if n == 2:
                dump([NF[0], NF[0] + 1, TD, TD + 1, TD + 2, TD + 3, TP, TP + 1, EMAX, EMAX + 1], "T")
            shift_and_scores(n)
            if n == 2:
                dump([CC] + [S0 + i for i in range(28)], "S")
            softmax_pv([h])
            if n == 2:
                dump([ACC + i for i in range(4)] + [S0 + i for i in range(28)] + [V_TAILP] + [VF[0] + i for i in range(14)], "P")
            epilogue(V_STORE, 512 * qt + 16 * h)

    n = tile_id[0]
    A.mfma(M16, vt(TD, 4), vt(NF[0], 2), vt(ETC, 2), "0")
    A.valu("v_cvt_pk_bf16_f32", v(TP), v(TD), v(TD + 1))
    A.valu("v_cvt_pk_bf16_f32", v(TP + 1), v(TD + 2), v(TD + 3))
    A.mfma(M16, vt(TD, 4), vt(NF[1], 2), vt(ETC, 2), "0")
    A.mfma(M16, vt(RR, 4), vt(WR[0], 2), vt(ETC, 2), "0")
    A.valu("v_cvt_pk_bf16_f32", v(TA), v(TD), v(TD + 1))
    A.valu("v_cvt_pk_bf16_f32", v(TA + 1), v(TD + 2), v(TD + 3))
    A.valu("v_cndmask_b32_e64", v(TP), v(TP), v(TA), S_TSEL)
    A.valu("v_cndmask_b32_e64", v(TP + 1), v(TP + 1), v(TA + 1), S_TSEL)
    shift_and_scores(n)
    softmax_pv([0])
    epilogue(V_TS0, 0)
    A.mfma(M16, vt(RR, 4), vt(WR[1], 2), vt(ETC, 2), "0")
    pv_again(1)
    epilogue(V_TS1, 16)

    A.salu(f"s_cmp_lg_u32 {S_EXACT}, 0")
    A.salu("s_cbranch_scc1 L_end")
    A.salu("s_cmp_eq_u64 s[46:47], 0")
    A.salu("s_cbranch_scc1 L_end")
    A.salu(f"s_mov_b32 {S_EXACT}, 1")
    A.barrier()
    A.salu("s_branch L_main")

    for X in out_of_line:
        A.lines.extend(X.lines)
    A.raw("L_end:")
    A.raw("    s_endpgm")
    A.raw(f""".section .rodata,"a"
.p2align 6
.amdhsa_kernel {NAME}_kernel
  .amdhsa_next_free_vgpr {NVGPR}
  .amdhsa_next_free_sgpr 64
  .amdhsa_accum_offset {NVGPR}
  .amdhsa_group_segment_fixed_size 0
  .amdhsa_kernarg_size 64
  .amdhsa_user_sgpr_count 2
  .amdhsa_user_sgpr_kernarg_segment_ptr 1
  .amdhsa_system_sgpr_workgroup_id_x 1
.end_amdhsa_kernel""")
    sys.stderr.write(f"slots={A.slot} nops={A.nops}\n")
    return A.text()


if __name__ == "__main__":
    path = sys.argv[1] if len(sys.argv) > 1 else f"cdna_kernels/{NAME}.s"
    open(path, "w").write(gen())
```

```python
import math
import os
import struct
import sys

from asmlib import Asm

NAME = "standalone__attention_interact_autoint__recsys"
NB = 4096
OOB = 0x10000
WPG = int(os.environ.get("KWPG", "16"))


def f32hex(x):
    return "0x%08x" % struct.unpack("<I", struct.pack("<f", x))[0]


V_MAIN, V_STORE, V_TS0, V_TS1 = 1, 2, 3, 4
V_ABS = 6
V_TAILP, V_ZERO = 8, 9
E0 = 10
ETK = 22
ETC = 24
NF = (26, 28)
WR = (30, 32)
EMAX = 34
TP = 36
TA = 38
CC = 40
TD = 44
RR = 48
ACC = 52
VF = (56, 70)
S0 = 84
TMP = 112
TAILOP = 116
TP2 = 120
CC2 = 122
NVGPR = 128


def v(n):
    return f"v{n}"


def vt(n, k):
    return f"v[{n}:{n+k-1}]"


def efrag(kt):
    return E0 + 2 * kt if kt < 6 else ETK


def vfrag(h, kt):
    return VF[h] + 2 + 2 * kt if kt < 6 else VF[h]


M16 = "v_mfma_f32_16x16x16_bf16"
M32 = "v_mfma_f32_16x16x32_bf16"

S_EXACT = "s44"
S_BAD = "s[46:47]"
S_TSEL = "s[48:49]"


import os
DBG = os.environ.get("KDBG", "")

def gen():
    A = Asm()
    out_of_line = []
    dbg_slot = [0]

    def dump(regs, tag):
        if tag not in DBG.split(","):
            return
        A.salu("s_load_dwordx2 s[52:53], s[0:1], 56")
        A.waitcnt("lgkmcnt(0)")
        A.salu("s_mul_i32 s54, s33, 65536")
        A.salu("s_add_u32 s52, s52, s54")
        A.salu("s_addc_u32 s53, s53, 0")
        A.salu("s_mov_b32 s54, 65536")
        A.salu("s_mov_b32 s55, 0x00020000")
        A.valu("v_mbcnt_lo_u32_b32", v(119), "-1", "0")
        A.valu("v_mbcnt_hi_u32_b32", v(119), "-1", v(119))
        A.valu("v_lshlrev_b32", v(119), "2", v(119))
        for r in regs:
            A.salu(f"s_mov_b32 s56, {256*dbg_slot[0]}")
            A.vmem(f"buffer_store_dword {v(r)}, {v(119)}, s[52:55], s56 offen", r=[r, 119])
            sys.stderr.write(f"dump slot {dbg_slot[0]} = v{r} ({tag})\n")
            dbg_slot[0] += 1
        A.waitcnt("vmcnt(0)")

    A.raw(f"""; Kernarg layout for this problem (64 bytes, ptrs only, base s[0:1]):
; @launch grid=({NB // WPG},1,1) block=({64 * WPG},1,1) lds=0
.amdgcn_target "amdgcn-amd-amdhsa--gfx950"
.text
.globl {NAME}_kernel
.p2align 8
.type {NAME}_kernel,@function
{NAME}_kernel:""")

    if "time" in DBG.split(","):
        A.salu("s_memtime s[58:59]")
    A.salu("s_load_dwordx4 s[4:7], s[0:1], 0")
    A.salu("s_load_dwordx4 s[8:11], s[0:1], 16")
    A.salu("s_load_dwordx4 s[12:15], s[0:1], 32")
    A.valu("v_lshrrev_b32", v(7), "6", v(0))
    A.valu_sw("v_readfirstlane_b32", "s3", v(7))
    A.salu(f"s_mul_i32 s33, s2, {WPG}")
    A.salu("s_add_u32 s33, s33, s3")
    A.salu(f"s_cmp_ge_u32 s33, {NB}")
    A.salu("s_cbranch_scc1 L_end")

    LN, LI, LG, LI3 = 112, 113, 114, 116
    A.valu("v_and_b32", v(LN), "63", v(0))
    A.valu("v_and_b32", v(LI), "15", v(LN))
    A.valu("v_lshrrev_b32", v(LG), "4", v(LN))
    A.valu("v_and_b32", v(LI3), "3", v(LI))
    A.valu("v_lshlrev_b32", v(V_MAIN), "5", v(LI))
    A.valu("v_lshl_add_u32", v(V_STORE), v(LG), "2", v(V_MAIN))
    A.valu("v_lshl_add_u32", v(V_MAIN), v(LG), "3", v(V_MAIN))
    VOOB = 47
    A.valu("v_mov_b32", v(VOOB), "0x%x" % OOB)
    A.valu("v_lshlrev_b32", v(115), "3", v(LI))
    A.valu("v_lshl_add_u32", v(115), v(LG), "3", v(115))
    A.valu("v_add_u32", v(115), "3072", v(115))
    A.valu_sw("v_cmp_eq_u32", "vcc", "0", v(LI3))
    A.valu("v_cndmask_b32", v(115), v(VOOB), v(115), "vcc")
    A.valu("v_lshlrev_b32", v(118), "5", v(LI3))
    A.valu("v_lshl_add_u32", v(119), v(LG), "2", v(118))
    A.valu("v_lshl_add_u32", v(118), v(LG), "3", v(118))
    A.valu("v_add_u32", v(118), "3072", v(118))
    A.valu("v_add_u32", v(119), "3072", v(119))
    A.valu_sw("v_cmp_gt_u32", "vcc", "8", v(LI))
    A.valu("v_cndmask_b32", v(118), v(VOOB), v(118), "vcc")
    A.valu_sw("v_cmp_gt_u32", "vcc", "4", v(LI))
    A.valu("v_cndmask_b32", v(V_TS0), v(VOOB), v(119), "vcc")
    A.valu("v_lshrrev_b32", v(117), "2", v(LI))
    A.valu_sw("v_cmp_eq_u32", "vcc", "1", v(117))
    A.valu("v_cndmask_b32", v(V_TS1), v(VOOB), v(119), "vcc")
    VWQK, VWV, VWR = 44, 45, 46
    A.valu("v_lshlrev_b32", v(VWQK), "4", v(LI))
    A.valu("v_lshl_add_u32", v(VWQK), v(LG), "3", v(VWQK))
    A.valu_sw("v_cmp_gt_u32", "vcc", "2", v(LG))
    A.valu("v_cndmask_b32", v(VWQK), v(VOOB), v(VWQK), "vcc")
    A.valu("v_lshl_add_u32", v(117), v(117), "1", v(LI3))
    A.valu("v_lshlrev_b32", v(117), "1", v(117))
    A.valu("v_lshl_add_u32", v(VWV), v(LG), "6", v(117))
    A.valu("v_lshl_add_u32", v(VWR), v(LG), "7", v(117))
    A.valu_sw("v_cmp_gt_u32", "vcc", "2", v(LI3))
    A.valu("v_cndmask_b32", v(VWV), v(VOOB), v(VWV), "vcc")
    A.valu("v_cndmask_b32", v(VWR), v(VOOB), v(VWR), "vcc")
    A.valu("v_mov_b32", v(V_ZERO), "0")
    A.valu("v_mov_b32", v(V_ABS), "0x7fff7fff")
    A.valu_sw("v_cmp_eq_u32", "vcc", "2", v(LI3))
    A.valu("v_mov_b32", v(117), "1.0")
    A.valu("v_cndmask_b32", v(88), v(V_ZERO), v(117), "vcc")
    for r in (89, 90, 91):
        A.valu("v_mov_b32", v(r), v(88))
    A.salu("s_mov_b32 s48, 0x00f000f0")
    A.salu("s_mov_b32 s49, 0x00f000f0")
    A.salu(f"s_mov_b32 {S_EXACT}, 0")
    A.salu("s_mov_b64 s[46:47], 0")

    A.waitcnt("lgkmcnt(0)")
    A.salu("s_mul_i32 s34, s33, 3200")
    A.salu("s_add_u32 s16, s4, s34")
    A.salu("s_addc_u32 s17, s5, 0")
    A.salu("s_mov_b32 s18, 3200")
    A.salu("s_mov_b32 s19, 0x00020000")
    A.salu("s_add_u32 s20, s14, s34")
    A.salu("s_addc_u32 s21, s15, 0")
    A.salu("s_mov_b32 s22, 3200")
    A.salu("s_mov_b32 s23, 0x00020000")
    for base, lo in ((24, 6), (28, 8), (36, 10), (40, 12)):
        A.salu(f"s_mov_b32 s{base}, s{lo}")
        A.salu(f"s_mov_b32 s{base+1}, s{lo+1}")
        A.salu(f"s_mov_b32 s{base+2}, 512")
        A.salu(f"s_mov_b32 s{base+3}, 0x00020000")

    for h in (0, 1):
        A.vmem(f"buffer_load_dwordx2 {vt(100+4*h,2)}, {v(VWQK)}, s[24:27], 0 offen offset:{256*h}",
               w=range(100 + 4 * h, 102 + 4 * h), r=[VWQK])
        A.vmem(f"buffer_load_dwordx2 {vt(102+4*h,2)}, {v(VWQK)}, s[28:31], 0 offen offset:{256*h}",
               w=range(102 + 4 * h, 104 + 4 * h), r=[VWQK])
    for h in (0, 1):
        for s in range(4):
            reg = 92 + 4 * h + s
            A.vmem(f"buffer_load_ushort {v(reg)}, {v(VWV)}, s[36:39], 0 offen offset:{256*h+16*s}", w=[reg], r=[VWV])
    for h in (0, 1):
        for s in range(4):
            reg = 36 + 4 * h + s
            A.vmem(f"buffer_load_ushort {v(reg)}, {v(VWR)}, s[40:43], 0 offen offset:{32*s+16*h}", w=[reg], r=[VWR])
    for t in range(6):
        A.vmem(f"buffer_load_dwordx2 {vt(E0+2*t,2)}, {v(V_MAIN)}, s[16:19], 0 offen offset:{512*t}",
               w=range(E0 + 2 * t, E0 + 2 * t + 2), r=[V_MAIN])
    A.vmem(f"buffer_load_dwordx2 {vt(ETK,2)}, {v(115)}, s[16:19], 0 offen", w=[ETK, ETK + 1], r=[115])
    A.vmem(f"buffer_load_dwordx2 {vt(ETC,2)}, {v(118)}, s[16:19], 0 offen", w=[ETC, ETC + 1], r=[118])

    A.waitcnt("vmcnt(8)")
    for h in (0, 1):
        for j in range(2):
            A.valu("v_lshl_or_b32", v(84 + 2 * h + j), v(92 + 4 * h + 2 * j + 1), "16", v(92 + 4 * h + 2 * j))
            A.valu("v_lshl_or_b32", v(WR[h] + j), v(36 + 4 * h + 2 * j + 1), "16", v(36 + 4 * h + 2 * j))
    cscale = f32hex((8 ** -0.5) * math.log2(math.e))
    for h in (0, 1):
        A.mfma(M16, vt(108, 4), vt(100 + 4 * h, 2), vt(102 + 4 * h, 2), "0")
        for r in range(4):
            A.valu("v_mul_f32", v(108 + r), cscale, v(108 + r))
        A.valu("v_cvt_pk_bf16_f32", v(NF[h]), v(108), v(109))
        A.valu("v_cvt_pk_bf16_f32", v(NF[h] + 1), v(110), v(111))

    A.waitcnt("vmcnt(0)")
    for j in range(2):
        A.valu("v_and_b32", v(EMAX + j), v(V_ABS), v(E0 + j))
    for kt in range(1, 7):
        for j in range(2):
            A.valu("v_and_b32", v(116 + j), v(V_ABS), v(efrag(kt) + j))
            A.valu("v_pk_max_u16", v(EMAX + j), v(EMAX + j), v(116 + j))
    for sh in (8, 4, 2, 1):
        for j in range(2):
            A.valu("v_mov_b32_dpp", v(116 + j), v(EMAX + j), dpp=True,
                   extra=f"row_ror:{sh} row_mask:0xf bank_mask:0xf")
            A.valu("v_pk_max_u16", v(EMAX + j), v(EMAX + j), v(116 + j))

    k = 0
    for kt in range(7):
        for h in (0, 1):
            d = 92 + 4 * (k & 1)
            k += 1
            A.mfma(M16, vt(d, 4), vt(efrag(kt), 2), vt(84 + 2 * h, 2), vt(88, 4))
            A.valu("v_cvt_pk_bf16_f32", v(vfrag(h, kt)), v(d), v(d + 1))
            A.valu("v_cvt_pk_bf16_f32", v(vfrag(h, kt) + 1), v(d + 2), v(d + 3))

    negm = f32hex(-(1.0 + 2.0 ** -6))
    thr = f32hex(2.0 ** -60)
    for r in range(1, 4):
        A.valu("v_mov_b32", v(TAILOP + r), "0")

    tiles = [(h, qt) for qt in range(6) for h in (0, 1)] + [("tail", 6)]
    NT = len(tiles)
    TPB = (TP, TP2)
    CCB = (CC, CC2)

    def prep1(AA, t, cc=None):
        h, qt = tiles[t]
        if h != "tail":
            AA.mfma(M16, vt(TD, 4), vt(NF[h], 2), vt(E0 + 2 * qt, 2), "0")
        else:
            AA.mfma(M16, vt(TD, 4), vt(NF[0], 2), vt(ETC, 2), "0")
            AA.mfma(M16, vt(cc, 4), vt(NF[1], 2), vt(ETC, 2), "0")

    def prep2(AA, t, tp, cc):
        h, qt = tiles[t]
        AA.valu("v_cvt_pk_bf16_f32", v(tp), v(TD), v(TD + 1))
        AA.valu("v_cvt_pk_bf16_f32", v(tp + 1), v(TD + 2), v(TD + 3))
        if h == "tail":
            AA.valu("v_cvt_pk_bf16_f32", v(TA), v(cc), v(cc + 1))
            AA.valu("v_cvt_pk_bf16_f32", v(TA + 1), v(cc + 2), v(cc + 3))
            AA.valu("v_cndmask_b32_e64", v(tp), v(tp), v(TA), S_TSEL)
            AA.valu("v_cndmask_b32_e64", v(tp + 1), v(tp + 1), v(TA + 1), S_TSEL)
        AA.valu("v_and_b32", v(TA), v(V_ABS), v(tp))
        AA.valu("v_and_b32", v(TA + 1), v(V_ABS), v(tp + 1))
        AA.mfma(M16, vt(cc, 4), vt(EMAX, 2), vt(TA, 2), "0")

    def prep3(AA, cc):
        for r in range(4):
            AA.valu("v_mul_f32", v(cc + r), negm, v(cc + r))

    def smfma(AA, kt, tp, cc):
        AA.mfma(M16, vt(S0 + 4 * kt, 4), vt(efrag(kt), 2), vt(tp, 2), vt(cc, 4) if cc is not None else "0")

    def exps(AA, base, n):
        for i in range(n):
            AA.valu("v_exp_f32", v(base + i), v(base + i), trans=True)

    def cvts(AA, base):
        for i in range(4):
            AA.valu("v_cvt_pk_bf16_f32", v(base + i), v(base + 2 * i), v(base + 2 * i + 1))

    def pv(AA, h, p):
        if p < 3:
            AA.mfma(M32, vt(ACC, 4), vt(vfrag(h, 2 * p), 4), vt(S0 + 8 * p, 4), "0" if p == 0 else vt(ACC, 4))
        else:
            AA.mfma(M32, vt(ACC, 4), vt(vfrag(h, 6), 4), vt(TAILOP, 4), vt(ACC, 4))

    def rmfma(AA, t, h=None):
        hh, qt = tiles[t]
        if hh != "tail":
            AA.mfma(M16, vt(RR, 4), vt(WR[hh], 2), vt(E0 + 2 * qt, 2), "0")
        else:
            AA.mfma(M16, vt(RR, 4), vt(WR[h], 2), vt(ETC, 2), "0")

    def epilogue(AA, voff, imm, check=True):
        AA.valu("v_rcp_f32", v(TMP), v(ACC + 2), trans=True)
        if check:
            AA.valu_sw("v_cmp_gt_f32", "vcc", thr, v(ACC + 2))
            AA.salu("s_or_b64 s[46:47], s[46:47], vcc")
        AA.valu("v_fma_f32", v(TMP + 1), v(ACC), v(TMP), v(RR))
        AA.valu("v_fma_f32", v(TMP + 2), v(ACC + 1), v(TMP), v(RR + 1))
        AA.valu("v_cvt_pk_bf16_f32", v(TMP + 3), v(TMP + 1), v(TMP + 2))
        AA.valu("v_pk_max_i16", v(TMP + 3), v(TMP + 3), v(V_ZERO))
        AA.vmem(f"buffer_store_dword {v(TMP+3)}, {v(voff)}, s[20:23], 0 offen offset:{imm}",
                r=[TMP + 3, voff])

    def store_args(t, h=None):
        hh, qt = tiles[t]
        if hh != "tail":
            return V_STORE, 512 * qt + 16 * hh
        return (V_TS0, 0) if h == 0 else (V_TS1, 16)

    prep1(A, 0)
    prep2(A, 0, TPB[0], CCB[0])
    prep3(A, CCB[0])
    for kt in range(7):
        smfma(A, kt, TPB[0], CCB[0])

    pending_epi = None
    for t in range(NT):
        h, qt = tiles[t]
        hp = h if h != "tail" else 0
        nxt = t + 1 if t + 1 < NT else None
        tpn, ccn = TPB[(t + 1) & 1], CCB[(t + 1) & 1]
        if nxt is not None:
            prep1(A, nxt, ccn)
        exps(A, S0, 8)
        if pending_epi is not None:
            epilogue(A, *pending_epi)
            pending_epi = None
        rmfma(A, t, 0)
        if nxt is not None:
            prep2(A, nxt, tpn, ccn)
        cvts(A, S0)
        pv(A, hp, 0)
        exps(A, S0 + 8, 8)
        if nxt is not None:
            prep3(A, ccn)
        cvts(A, S0 + 8)
        pv(A, hp, 1)
        if nxt is not None:
            smfma(A, 0, tpn, ccn)
            smfma(A, 1, tpn, ccn)
        exps(A, S0 + 16, 8)
        cvts(A, S0 + 16)
        pv(A, hp, 2)
        if nxt is not None:
            smfma(A, 2, tpn, ccn)
            smfma(A, 3, tpn, ccn)
        exps(A, S0 + 24, 1)
        A.valu("v_cvt_pk_bf16_f32", v(TAILOP), v(S0 + 24), "0")
        pv(A, hp, 3)
        if nxt is not None:
            smfma(A, 4, tpn, ccn)
            smfma(A, 5, tpn, ccn)
            smfma(A, 6, tpn, ccn)
            pending_epi = store_args(t)
        else:
            epilogue(A, *store_args(t, 0))
            rmfma(A, t, 1)
            for p in range(4):
                pv(A, 1, p)
            epilogue(A, *store_args(t, 1))

    A.salu("s_cmp_eq_u64 s[46:47], 0")
    A.salu("s_cbranch_scc1 L_end")

    A.barrier()
    for t in range(NT):
        h, qt = tiles[t]
        hp = h if h != "tail" else 0
        prep1(A, t, CC)
        rmfma(A, t, 0)
        A.valu("v_cvt_pk_bf16_f32", v(TP), v(TD), v(TD + 1))
        A.valu("v_cvt_pk_bf16_f32", v(TP + 1), v(TD + 2), v(TD + 3))
        if h == "tail":
            A.valu("v_cvt_pk_bf16_f32", v(TA), v(CC), v(CC + 1))
            A.valu("v_cvt_pk_bf16_f32", v(TA + 1), v(CC + 2), v(CC + 3))
            A.valu("v_cndmask_b32_e64", v(TP), v(TP), v(TA), S_TSEL)
            A.valu("v_cndmask_b32_e64", v(TP + 1), v(TP + 1), v(TA + 1), S_TSEL)
        for kt in range(7):
            smfma(A, kt, TP, None)
        vals = [S0 + i for i in range(24)] + [S0 + 24]
        A.valu("v_max3_f32", v(TMP), v(vals[0]), v(vals[1]), v(vals[2]))
        i = 3
        while i + 1 < len(vals):
            A.valu("v_max3_f32", v(TMP), v(TMP), v(vals[i]), v(vals[i + 1]))
            i += 2
        if i < len(vals):
            A.valu("v_max_f32", v(TMP), v(TMP), v(vals[i]))
        for op in ("v_permlane32_swap_b32", "v_permlane16_swap_b32"):
            A.valu("v_mov_b32", v(TMP + 1), v(TMP))
            A.permlane(op, v(TMP), v(TMP + 1))
            A.valu("v_max_f32", v(TMP), v(TMP), v(TMP + 1))
        for r in range(4):
            A.valu("v_mul_f32", v(CC + r), "-1.0", v(TMP))
        for kt in range(7):
            smfma(A, kt, TP, CC)
        for p in range(3):
            exps(A, S0 + 8 * p, 8)
            cvts(A, S0 + 8 * p)
        exps(A, S0 + 24, 1)
        A.valu("v_cvt_pk_bf16_f32", v(TAILOP), v(S0 + 24), "0")
        for p in range(4):
            pv(A, hp, p)
        epilogue(A, *store_args(t, 0), check=False)
        if h == "tail":
            rmfma(A, t, 1)
            for p in range(4):
                pv(A, 1, p)
            epilogue(A, *store_args(t, 1), check=False)

    for X in out_of_line:
        A.lines.extend(X.lines)
    A.raw("L_end:")
    if "time" in DBG.split(","):
        A.salu("s_cmp_ge_u32 s33, 4096")
        A.salu("s_cbranch_scc1 L_end2")
        A.salu("s_memtime s[60:61]")
        A.salu("s_load_dwordx2 s[52:53], s[0:1], 56")
        A.waitcnt("lgkmcnt(0)")
        A.salu("s_lshl_b32 s54, s33, 4")
        A.salu("s_add_u32 s52, s52, s54")
        A.salu("s_addc_u32 s53, s53, 0")
        A.salu("s_mov_b32 s54, 16")
        A.salu("s_mov_b32 s55, 0x00020000")
        A.valu("v_mov_b32", v(112), "s58")
        A.valu("v_mov_b32", v(113), "s59")
        A.valu("v_mov_b32", v(114), "s60")
        A.valu("v_mov_b32", v(115), "s61")
        A.valu("v_mov_b32", v(116), "0")
        A.vmem(f"buffer_store_dwordx4 v[112:115], v116, s[52:55], 0 offen", r=[112,113,114,115,116])
        A.raw("L_end2:")
    A.raw("    s_endpgm")
    A.raw(f""".section .rodata,"a"
.p2align 6
.amdhsa_kernel {NAME}_kernel
  .amdhsa_next_free_vgpr {NVGPR}
  .amdhsa_next_free_sgpr 64
  .amdhsa_accum_offset {NVGPR}
  .amdhsa_group_segment_fixed_size 0
  .amdhsa_kernarg_size 64
  .amdhsa_user_sgpr_count 2
  .amdhsa_user_sgpr_kernarg_segment_ptr 1
  .amdhsa_system_sgpr_workgroup_id_x 1
.end_amdhsa_kernel""")
    sys.stderr.write(f"slots={A.slot} nops={A.nops}\n")
    return A.text()


if __name__ == "__main__":
    path = sys.argv[1] if len(sys.argv) > 1 else f"cdna_kernels/{NAME}.s"
    open(path, "w").write(gen())
```

```python
import math
import os
import struct
import sys

from asmlib import Asm

NAME = "standalone__attention_interact_autoint__recsys"
NB = 4096
OOB = 0x10000
WPG = int(os.environ.get("KWPG", "16"))


def f32hex(x):
    return "0x%08x" % struct.unpack("<I", struct.pack("<f", x))[0]


V_MAIN, V_STORE, V_TS0, V_TS1 = 1, 2, 3, 4
V_ABS = 6
V_TAILP, V_ZERO = 8, 9
E0 = 10
ETK = 22
ETC = 24
NF = (26, 28)
WR = (30, 32)
EMAX = 34
TP = 36
TA = 38
CC = 40
TD = 44
RR = 48
ACC = 52
VF = (56, 70)
S0 = 84
TMP = 112
TAILOP = 116
TP2 = 120
CC2 = 122
NVGPR = 128


def v(n):
    return f"v{n}"


def vt(n, k):
    return f"v[{n}:{n+k-1}]"


def efrag(kt):
    return E0 + 2 * kt if kt < 6 else ETK


def vfrag(h, kt):
    return VF[h] + 2 + 2 * kt if kt < 6 else VF[h]


M16 = "v_mfma_f32_16x16x16_bf16"
M32 = "v_mfma_f32_16x16x32_bf16"

S_EXACT = "s44"
S_BAD = "s[46:47]"
S_TSEL = "s[48:49]"


import os
DBG = os.environ.get("KDBG", "")

def gen():
    A = Asm()
    out_of_line = []
    dbg_slot = [0]

    def dump(regs, tag):
        if tag not in DBG.split(","):
            return
        A.salu("s_load_dwordx2 s[52:53], s[0:1], 56")
        A.waitcnt("lgkmcnt(0)")
        A.salu("s_mul_i32 s54, s33, 65536")
        A.salu("s_add_u32 s52, s52, s54")
        A.salu("s_addc_u32 s53, s53, 0")
        A.salu("s_mov_b32 s54, 65536")
        A.salu("s_mov_b32 s55, 0x00020000")
        A.valu("v_mbcnt_lo_u32_b32", v(119), "-1", "0")
        A.valu("v_mbcnt_hi_u32_b32", v(119), "-1", v(119))
        A.valu("v_lshlrev_b32", v(119), "2", v(119))
        for r in regs:
            A.salu(f"s_mov_b32 s56, {256*dbg_slot[0]}")
            A.vmem(f"buffer_store_dword {v(r)}, {v(119)}, s[52:55], s56 offen", r=[r, 119])
            sys.stderr.write(f"dump slot {dbg_slot[0]} = v{r} ({tag})\n")
            dbg_slot[0] += 1
        A.waitcnt("vmcnt(0)")

    A.raw(f"""; Kernarg layout for this problem (64 bytes, ptrs only, base s[0:1]):
; @launch grid=({NB // WPG},1,1) block=({64 * WPG},1,1) lds=0
.amdgcn_target "amdgcn-amd-amdhsa--gfx950"
.text
.globl {NAME}_kernel
.p2align 8
.type {NAME}_kernel,@function
{NAME}_kernel:""")

    if "time" in DBG.split(","):
        A.salu("s_memtime s[58:59]")
    A.salu("s_load_dwordx4 s[4:7], s[0:1], 0")
    A.salu("s_load_dwordx4 s[8:11], s[0:1], 16")
    A.salu("s_load_dwordx4 s[12:15], s[0:1], 32")
    A.valu("v_lshrrev_b32", v(7), "6", v(0))
    A.valu_sw("v_readfirstlane_b32", "s3", v(7))
    A.salu(f"s_mul_i32 s33, s2, {WPG}")
    A.salu("s_add_u32 s33, s33, s3")
    A.salu(f"s_cmp_ge_u32 s33, {NB}")
    A.salu("s_cbranch_scc1 L_end")

    LN, LI, LG, LI3 = 112, 113, 114, 116
    A.valu("v_and_b32", v(LN), "63", v(0))
    A.valu("v_and_b32", v(LI), "15", v(LN))
    A.valu("v_lshrrev_b32", v(LG), "4", v(LN))
    A.valu("v_and_b32", v(LI3), "3", v(LI))
    A.valu("v_lshlrev_b32", v(V_MAIN), "5", v(LI))
    A.valu("v_lshl_add_u32", v(V_STORE), v(LG), "2", v(V_MAIN))
    A.valu("v_lshl_add_u32", v(V_MAIN), v(LG), "3", v(V_MAIN))
    VOOB = 47
    A.valu("v_mov_b32", v(VOOB), "0x%x" % OOB)
    A.valu("v_lshlrev_b32", v(115), "3", v(LI))
    A.valu("v_lshl_add_u32", v(115), v(LG), "3", v(115))
    A.valu("v_add_u32", v(115), "3072", v(115))
    A.valu_sw("v_cmp_eq_u32", "vcc", "0", v(LI3))
    A.valu("v_cndmask_b32", v(115), v(VOOB), v(115), "vcc")
    A.valu("v_lshlrev_b32", v(118), "5", v(LI3))
    A.valu("v_lshl_add_u32", v(119), v(LG), "2", v(118))
    A.valu("v_lshl_add_u32", v(118), v(LG), "3", v(118))
    A.valu("v_add_u32", v(118), "3072", v(118))
    A.valu("v_add_u32", v(119), "3072", v(119))
    A.valu_sw("v_cmp_gt_u32", "vcc", "8", v(LI))
    A.valu("v_cndmask_b32", v(118), v(VOOB), v(118), "vcc")
    A.valu_sw("v_cmp_gt_u32", "vcc", "4", v(LI))
    A.valu("v_cndmask_b32", v(V_TS0), v(VOOB), v(119), "vcc")
    A.valu("v_lshrrev_b32", v(117), "2", v(LI))
    A.valu_sw("v_cmp_eq_u32", "vcc", "1", v(117))
    A.valu("v_cndmask_b32", v(V_TS1), v(VOOB), v(119), "vcc")
    VWQK, VWV, VWR = 44, 45, 46
    A.valu("v_lshlrev_b32", v(VWQK), "4", v(LI))
    A.valu("v_lshl_add_u32", v(VWQK), v(LG), "3", v(VWQK))
    A.valu_sw("v_cmp_gt_u32", "vcc", "2", v(LG))
    A.valu("v_cndmask_b32", v(VWQK), v(VOOB), v(VWQK), "vcc")
    A.valu("v_lshl_add_u32", v(117), v(117), "1", v(LI3))
    A.valu("v_lshlrev_b32", v(117), "1", v(117))
    A.valu("v_lshl_add_u32", v(VWV), v(LG), "6", v(117))
    A.valu("v_lshl_add_u32", v(VWR), v(LG), "7", v(117))
    A.valu_sw("v_cmp_gt_u32", "vcc", "2", v(LI3))
    A.valu("v_cndmask_b32", v(VWV), v(VOOB), v(VWV), "vcc")
    A.valu("v_cndmask_b32", v(VWR), v(VOOB), v(VWR), "vcc")
    A.valu("v_mov_b32", v(V_ZERO), "0")
    A.valu("v_mov_b32", v(V_ABS), "0x7fff7fff")
    A.valu_sw("v_cmp_eq_u32", "vcc", "2", v(LI3))
    A.valu("v_mov_b32", v(117), "1.0")
    A.valu("v_cndmask_b32", v(88), v(V_ZERO), v(117), "vcc")
    for r in (89, 90, 91):
        A.valu("v_mov_b32", v(r), v(88))
    A.salu("s_mov_b32 s48, 0x00f000f0")
    A.salu("s_mov_b32 s49, 0x00f000f0")
    A.salu(f"s_mov_b32 {S_EXACT}, 0")
    A.salu("s_mov_b64 s[46:47], 0")

    A.waitcnt("lgkmcnt(0)")
    A.salu("s_mul_i32 s34, s33, 3200")
    A.salu("s_add_u32 s16, s4, s34")
    A.salu("s_addc_u32 s17, s5, 0")
    A.salu("s_mov_b32 s18, 3200")
    A.salu("s_mov_b32 s19, 0x00020000")
    A.salu("s_add_u32 s20, s14, s34")
    A.salu("s_addc_u32 s21, s15, 0")
    A.salu("s_mov_b32 s22, 3200")
    A.salu("s_mov_b32 s23, 0x00020000")
    for base, lo in ((24, 6), (28, 8), (36, 10), (40, 12)):
        A.salu(f"s_mov_b32 s{base}, s{lo}")
        A.salu(f"s_mov_b32 s{base+1}, s{lo+1}")
        A.salu(f"s_mov_b32 s{base+2}, 512")
        A.salu(f"s_mov_b32 s{base+3}, 0x00020000")

    for h in (0, 1):
        A.vmem(f"buffer_load_dwordx2 {vt(100+4*h,2)}, {v(VWQK)}, s[24:27], 0 offen offset:{256*h}",
               w=range(100 + 4 * h, 102 + 4 * h), r=[VWQK])
        A.vmem(f"buffer_load_dwordx2 {vt(102+4*h,2)}, {v(VWQK)}, s[28:31], 0 offen offset:{256*h}",
               w=range(102 + 4 * h, 104 + 4 * h), r=[VWQK])
    for h in (0, 1):
        for s in range(4):
            reg = 92 + 4 * h + s
            A.vmem(f"buffer_load_ushort {v(reg)}, {v(VWV)}, s[36:39], 0 offen offset:{256*h+16*s}", w=[reg], r=[VWV])
    for h in (0, 1):
        for s in range(4):
            reg = 36 + 4 * h + s
            A.vmem(f"buffer_load_ushort {v(reg)}, {v(VWR)}, s[40:43], 0 offen offset:{32*s+16*h}", w=[reg], r=[VWR])
    for t in range(6):
        A.vmem(f"buffer_load_dwordx2 {vt(E0+2*t,2)}, {v(V_MAIN)}, s[16:19], 0 offen offset:{512*t}",
               w=range(E0 + 2 * t, E0 + 2 * t + 2), r=[V_MAIN])
    A.vmem(f"buffer_load_dwordx2 {vt(ETK,2)}, {v(115)}, s[16:19], 0 offen", w=[ETK, ETK + 1], r=[115])
    A.vmem(f"buffer_load_dwordx2 {vt(ETC,2)}, {v(118)}, s[16:19], 0 offen", w=[ETC, ETC + 1], r=[118])

    A.waitcnt("vmcnt(8)")
    for h in (0, 1):
        for j in range(2):
            A.valu("v_lshl_or_b32", v(84 + 2 * h + j), v(92 + 4 * h + 2 * j + 1), "16", v(92 + 4 * h + 2 * j))
            A.valu("v_lshl_or_b32", v(WR[h] + j), v(36 + 4 * h + 2 * j + 1), "16", v(36 + 4 * h + 2 * j))
    cscale = f32hex((8 ** -0.5) * math.log2(math.e))
    for h in (0, 1):
        A.mfma(M16, vt(108, 4), vt(100 + 4 * h, 2), vt(102 + 4 * h, 2), "0")
        for r in range(4):
            A.valu("v_mul_f32", v(108 + r), cscale, v(108 + r))
        A.valu("v_cvt_pk_bf16_f32", v(NF[h]), v(108), v(109))
        A.valu("v_cvt_pk_bf16_f32", v(NF[h] + 1), v(110), v(111))

    A.waitcnt("vmcnt(0)")
    for j in range(2):
        A.valu("v_and_b32", v(EMAX + j), v(V_ABS), v(E0 + j))
    for kt in range(1, 7):
        for j in range(2):
            A.valu("v_and_b32", v(116 + j), v(V_ABS), v(efrag(kt) + j))
            A.valu("v_pk_max_u16", v(EMAX + j), v(EMAX + j), v(116 + j))
    for sh in (8, 4, 2, 1):
        for j in range(2):
            A.valu("v_mov_b32_dpp", v(116 + j), v(EMAX + j), dpp=True,
                   extra=f"row_ror:{sh} row_mask:0xf bank_mask:0xf")
            A.valu("v_pk_max_u16", v(EMAX + j), v(EMAX + j), v(116 + j))

    sc = f32hex(-(1.0 + 2.0 ** -5))
    for j in range(2):
        A.valu("v_lshlrev_b32", v(116), "16", v(EMAX + j))
        A.valu("v_and_b32", v(117), "0xffff0000", v(EMAX + j))
        A.valu("v_mul_f32", v(116), sc, v(116))
        A.valu("v_mul_f32", v(117), sc, v(117))
        A.valu("v_cvt_pk_bf16_f32", v(EMAX + j), v(116), v(117))

    k = 0
    for kt in range(7):
        for h in (0, 1):
            d = 92 + 4 * (k & 1)
            k += 1
            A.mfma(M16, vt(d, 4), vt(efrag(kt), 2), vt(84 + 2 * h, 2), vt(88, 4))
            A.valu("v_cvt_pk_bf16_f32", v(vfrag(h, kt)), v(d), v(d + 1))
            A.valu("v_cvt_pk_bf16_f32", v(vfrag(h, kt) + 1), v(d + 2), v(d + 3))

    negm = f32hex(-(1.0 + 2.0 ** -6))
    thr = f32hex(2.0 ** -60)
    for r in range(1, 4):
        A.valu("v_mov_b32", v(TAILOP + r), "0")

    tiles = [(h, qt) for qt in range(6) for h in (0, 1)] + [("tail", 6)]
    NT = len(tiles)
    TPB = (TP, TP2)
    CCB = (CC, CC2)

    def prep1(AA, t, cc=None):
        h, qt = tiles[t]
        if h != "tail":
            AA.mfma(M16, vt(TD, 4), vt(NF[h], 2), vt(E0 + 2 * qt, 2), "0")
        else:
            AA.mfma(M16, vt(TD, 4), vt(NF[0], 2), vt(ETC, 2), "0")
            AA.mfma(M16, vt(cc, 4), vt(NF[1], 2), vt(ETC, 2), "0")

    def prep2(AA, t, tp, cc):
        h, qt = tiles[t]
        AA.valu("v_cvt_pk_bf16_f32", v(tp), v(TD), v(TD + 1))
        AA.valu("v_cvt_pk_bf16_f32", v(tp + 1), v(TD + 2), v(TD + 3))
        if h == "tail":
            AA.valu("v_cvt_pk_bf16_f32", v(TA), v(cc), v(cc + 1))
            AA.valu("v_cvt_pk_bf16_f32", v(TA + 1), v(cc + 2), v(cc + 3))
            AA.valu("v_cndmask_b32_e64", v(tp), v(tp), v(TA), S_TSEL)
            AA.valu("v_cndmask_b32_e64", v(tp + 1), v(tp + 1), v(TA + 1), S_TSEL)
        AA.valu("v_and_b32", v(TA), v(V_ABS), v(tp))
        AA.valu("v_and_b32", v(TA + 1), v(V_ABS), v(tp + 1))
        AA.mfma(M16, vt(cc, 4), vt(EMAX, 2), vt(TA, 2), "0")

    def prep3(AA, cc):
        pass

    def smfma(AA, kt, tp, cc):
        AA.mfma(M16, vt(S0 + 4 * kt, 4), vt(efrag(kt), 2), vt(tp, 2), vt(cc, 4) if cc is not None else "0")

    def exps(AA, base, n):
        for i in range(n):
            AA.valu("v_exp_f32", v(base + i), v(base + i), trans=True)

    def cvts(AA, base):
        for i in range(4):
            AA.valu("v_cvt_pk_bf16_f32", v(base + i), v(base + 2 * i), v(base + 2 * i + 1))

    def pv(AA, h, p):
        if p < 3:
            AA.mfma(M32, vt(ACC, 4), vt(vfrag(h, 2 * p), 4), vt(S0 + 8 * p, 4), "0" if p == 0 else vt(ACC, 4))
        else:
            AA.mfma(M32, vt(ACC, 4), vt(vfrag(h, 6), 4), vt(TAILOP, 4), vt(ACC, 4))

    def rmfma(AA, t, h=None):
        hh, qt = tiles[t]
        if hh != "tail":
            AA.mfma(M16, vt(RR, 4), vt(WR[hh], 2), vt(E0 + 2 * qt, 2), "0")
        else:
            AA.mfma(M16, vt(RR, 4), vt(WR[h], 2), vt(ETC, 2), "0")

    def epilogue(AA, voff, imm, check=True):
        AA.valu("v_rcp_f32", v(TMP), v(ACC + 2), trans=True)
        if check:
            AA.valu_sw("v_cmp_gt_f32", "vcc", thr, v(ACC + 2))
            AA.salu("s_or_b64 s[46:47], s[46:47], vcc")
        AA.valu("v_fma_f32", v(TMP + 1), v(ACC), v(TMP), v(RR))
        AA.valu("v_fma_f32", v(TMP + 2), v(ACC + 1), v(TMP), v(RR + 1))
        AA.valu("v_cvt_pk_bf16_f32", v(TMP + 3), v(TMP + 1), v(TMP + 2))
        AA.valu("v_pk_max_i16", v(TMP + 3), v(TMP + 3), v(V_ZERO))
        AA.vmem(f"buffer_store_dword {v(TMP+3)}, {v(voff)}, s[20:23], 0 offen offset:{imm}",
                r=[TMP + 3, voff])

    def store_args(t, h=None):
        hh, qt = tiles[t]
        if hh != "tail":
            return V_STORE, 512 * qt + 16 * hh
        return (V_TS0, 0) if h == 0 else (V_TS1, 16)

    prep1(A, 0)
    prep2(A, 0, TPB[0], CCB[0])
    prep3(A, CCB[0])
    for kt in range(7):
        smfma(A, kt, TPB[0], CCB[0])

    pending_epi = None
    for t in range(NT):
        h, qt = tiles[t]
        hp = h if h != "tail" else 0
        nxt = t + 1 if t + 1 < NT else None
        tpn, ccn = TPB[(t + 1) & 1], CCB[(t + 1) & 1]
        if nxt is not None:
            prep1(A, nxt, ccn)
        exps(A, S0, 8)
        if pending_epi is not None:
            epilogue(A, *pending_epi)
            pending_epi = None
        rmfma(A, t, 0)
        if nxt is not None:
            prep2(A, nxt, tpn, ccn)
        cvts(A, S0)
        pv(A, hp, 0)
        exps(A, S0 + 8, 8)
        if nxt is not None:
            prep3(A, ccn)
        cvts(A, S0 + 8)
        pv(A, hp, 1)
        if nxt is not None:
            smfma(A, 0, tpn, ccn)
            smfma(A, 1, tpn, ccn)
        exps(A, S0 + 16, 8)
        cvts(A, S0 + 16)
        pv(A, hp, 2)
        if nxt is not None:
            smfma(A, 2, tpn, ccn)
            smfma(A, 3, tpn, ccn)
        exps(A, S0 + 24, 1)
        A.valu("v_cvt_pk_bf16_f32", v(TAILOP), v(S0 + 24), "0")
        pv(A, hp, 3)
        if nxt is not None:
            smfma(A, 4, tpn, ccn)
            smfma(A, 5, tpn, ccn)
            smfma(A, 6, tpn, ccn)
            pending_epi = store_args(t)
        else:
            epilogue(A, *store_args(t, 0))
            rmfma(A, t, 1)
            for p in range(4):
                pv(A, 1, p)
            epilogue(A, *store_args(t, 1))

    A.salu("s_cmp_eq_u64 s[46:47], 0")
    A.salu("s_cbranch_scc1 L_end")

    A.barrier()
    for t in range(NT):
        h, qt = tiles[t]
        hp = h if h != "tail" else 0
        prep1(A, t, CC)
        rmfma(A, t, 0)
        A.valu("v_cvt_pk_bf16_f32", v(TP), v(TD), v(TD + 1))
        A.valu("v_cvt_pk_bf16_f32", v(TP + 1), v(TD + 2), v(TD + 3))
        if h == "tail":
            A.valu("v_cvt_pk_bf16_f32", v(TA), v(CC), v(CC + 1))
            A.valu("v_cvt_pk_bf16_f32", v(TA + 1), v(CC + 2), v(CC + 3))
            A.valu("v_cndmask_b32_e64", v(TP), v(TP), v(TA), S_TSEL)
            A.valu("v_cndmask_b32_e64", v(TP + 1), v(TP + 1), v(TA + 1), S_TSEL)
        for kt in range(7):
            smfma(A, kt, TP, None)
        vals = [S0 + i for i in range(24)] + [S0 + 24]
        A.valu("v_max3_f32", v(TMP), v(vals[0]), v(vals[1]), v(vals[2]))
        i = 3
        while i + 1 < len(vals):
            A.valu("v_max3_f32", v(TMP), v(TMP), v(vals[i]), v(vals[i + 1]))
            i += 2
        if i < len(vals):
            A.valu("v_max_f32", v(TMP), v(TMP), v(vals[i]))
        for op in ("v_permlane32_swap_b32", "v_permlane16_swap_b32"):
            A.valu("v_mov_b32", v(TMP + 1), v(TMP))
            A.permlane(op, v(TMP), v(TMP + 1))
            A.valu("v_max_f32", v(TMP), v(TMP), v(TMP + 1))
        for r in range(4):
            A.valu("v_mul_f32", v(CC + r), "-1.0", v(TMP))
        for kt in range(7):
            smfma(A, kt, TP, CC)
        for p in range(3):
            exps(A, S0 + 8 * p, 8)
            cvts(A, S0 + 8 * p)
        exps(A, S0 + 24, 1)
        A.valu("v_cvt_pk_bf16_f32", v(TAILOP), v(S0 + 24), "0")
        for p in range(4):
            pv(A, hp, p)
        epilogue(A, *store_args(t, 0), check=False)
        if h == "tail":
            rmfma(A, t, 1)
            for p in range(4):
                pv(A, 1, p)
            epilogue(A, *store_args(t, 1), check=False)

    for X in out_of_line:
        A.lines.extend(X.lines)
    A.raw("L_end:")
    if "time" in DBG.split(","):
        A.salu("s_cmp_ge_u32 s33, 4096")
        A.salu("s_cbranch_scc1 L_end2")
        A.salu("s_memtime s[60:61]")
        A.salu("s_load_dwordx2 s[52:53], s[0:1], 56")
        A.waitcnt("lgkmcnt(0)")
        A.salu("s_lshl_b32 s54, s33, 4")
        A.salu("s_add_u32 s52, s52, s54")
        A.salu("s_addc_u32 s53, s53, 0")
        A.salu("s_mov_b32 s54, 16")
        A.salu("s_mov_b32 s55, 0x00020000")
        A.valu("v_mov_b32", v(112), "s58")
        A.valu("v_mov_b32", v(113), "s59")
        A.valu("v_mov_b32", v(114), "s60")
        A.valu("v_mov_b32", v(115), "s61")
        A.valu("v_mov_b32", v(116), "0")
        A.vmem(f"buffer_store_dwordx4 v[112:115], v116, s[52:55], 0 offen", r=[112,113,114,115,116])
        A.raw("L_end2:")
    A.raw("    s_endpgm")
    A.raw(f""".section .rodata,"a"
.p2align 6
.amdhsa_kernel {NAME}_kernel
  .amdhsa_next_free_vgpr {NVGPR}
  .amdhsa_next_free_sgpr 64
  .amdhsa_accum_offset {NVGPR}
  .amdhsa_group_segment_fixed_size 0
  .amdhsa_kernarg_size 64
  .amdhsa_user_sgpr_count 2
  .amdhsa_user_sgpr_kernarg_segment_ptr 1
  .amdhsa_system_sgpr_workgroup_id_x 1
.end_amdhsa_kernel""")
    sys.stderr.write(f"slots={A.slot} nops={A.nops}\n")
    return A.text()


if __name__ == "__main__":
    path = sys.argv[1] if len(sys.argv) > 1 else f"cdna_kernels/{NAME}.s"
    open(path, "w").write(gen())
```
